```python
import torch

def _softmax(x, axis=-1):
    return torch.softmax(x, dim=axis)
def _gelu(x):
    return torch.nn.functional.gelu(x, approximate="tanh")
def _silu(x):
    return torch.nn.functional.silu(x)
def _sigmoid(x):
    return torch.sigmoid(x)
def _layernorm(x, axis=-1, eps=1e-5):
    m = x.mean(dim=axis, keepdim=True)
    v = x.var(dim=axis, keepdim=True, unbiased=False)
    return (x - m) / torch.sqrt(v + eps)
def _scatter_add(tgt, idx, src, axis=0):
    return tgt.clone().index_add_(axis, idx, src)
def _segment_sum(src, seg, n):
    out = torch.zeros((n,) + src.shape[1:], dtype=src.dtype)
    return out.index_add_(0, seg, src)
def _pad(x, pw):
    flat = tuple(v for pair in reversed(pw) for v in pair)
    return torch.nn.functional.pad(x, flat)

kernel_name = 'standalone__gqa_softmax__prompt'

def setup_inputs():

    _w = (lambda a: (lambda t: t.to(torch.bfloat16) if t.is_floating_point() else t)(torch.as_tensor(a)))
    B, Hq, Hkv, Sq, Sk, D = 1, 32, 8, 2048, 2048, 128
    return {
        "q": _w((lambda *s: torch.randn(*s, dtype=torch.bfloat16) * 0.8)(B, Hq, Sq, D)),
        "k": _w((lambda *s: torch.randn(*s, dtype=torch.bfloat16) * 0.8)(B, Hkv, Sk, D)),
        "v": _w((lambda *s: torch.randn(*s, dtype=torch.bfloat16) * 0.05)(B, Hkv, Sk, D)),
    }

def reference(q, k, v):
    B, Hq, Sq, D = q.shape
    Hkv = k.shape[1]
    rep = Hq // Hkv
    k = (lambda x, n, axis: torch.repeat_interleave(x, n, dim=axis))(k, rep, axis=1)
    v = (lambda x, n, axis: torch.repeat_interleave(x, n, dim=axis))(v, rep, axis=1)
    scale = D ** -0.5
    scores = torch.einsum("bhqd,bhkd->bhqk", q, k) * scale
    p = _softmax(scores, axis=-1)
    return torch.einsum("bhqk,bhkd->bhqd", p, v)
```

```python
import re

def regs_of(tok):
    tok = tok.strip().lstrip('-').strip('|')
    m = re.fullmatch(r'([vas])(\d+)', tok)
    if m: return [(m.group(1), int(m.group(2)))]
    m = re.fullmatch(r'([vas])\[(\d+):(\d+)\]', tok)
    if m: return [(m.group(1), i) for i in range(int(m.group(2)), int(m.group(3))+1)]
    if tok == 'vcc': return [('s', 'vcc')]
    if tok == 'm0': return [('s', 'm0')]
    if tok == 'exec': return [('s', 'exec')]
    return []

TRANS = ('v_exp_f32', 'v_rcp_f32', 'v_log_f32', 'v_rsq_f32', 'v_sqrt_f32')

class I:
    def __init__(s, text):
        s.text = text
        t = text.split(';')[0].strip()
        s.op = t.split()[0] if t else ''
        rest = t[len(s.op):].strip()
        ops = [x.strip() for x in rest.split(',')] if rest else []
        if ops:
            last = ops[-1].split()
            s.mods = last[1:]
            ops[-1] = last[0] if last else ''
        else:
            s.mods = []
        s.ops = ops
        op = s.op
        s.kind = 'other'; s.w = []; s.r = []
        R = lambda xs: [q for x in xs for q in regs_of(x)]
        if op.startswith('v_mfma'):
            s.kind = 'mfma'; s.w = R(ops[:1]); s.ab = R(ops[1:3]); s.c = R(ops[3:4]); s.r = s.ab + s.c
            s.passes = 4 if '16x16x32' in op else 8
        elif op.startswith('v_smfmac'):
            s.kind = 'mfma'; s.w = R(ops[:1]); s.ab = R(ops[1:4]); s.c = R(ops[:1]); s.r = s.ab + s.c
            s.passes = 4
        elif op.startswith('v_cmp'):
            s.kind = 'valu'; s.w = R(ops[:1]); s.r = R(ops[1:])
        elif op.startswith('v_readfirstlane') or op.startswith('v_readlane'):
            s.kind = 'valu'; s.w = R(ops[:1]); s.r = R(ops[1:]); s.lane = True
        elif op.startswith('v_permlane'):
            s.kind = 'valu'; s.w = R(ops[:2]); s.r = R(ops[:2]); s.perm = True
        elif op.startswith('v_'):
            s.kind = 'valu'; s.w = R(ops[:1]); s.r = R(ops[1:])
            if op.startswith('v_fmac') or op.startswith('v_dot2c'): s.r += s.w
            if op.startswith('v_cndmask') and len(ops) == 3: s.r += [('s', 'vcc')]
            if any(m.startswith(('row_', 'quad_perm', 'dpp')) for m in s.mods): s.dpp = True
        elif op.startswith('ds_read'):
            s.kind = 'ds'; s.w = R(ops[:1]); s.r = R(ops[1:])
        elif op.startswith('ds_write') or op.startswith('ds_add') or op.startswith('ds_or') or op.startswith('ds_max'):
            s.kind = 'ds'; s.r = R(ops)
        elif op.startswith('ds_bpermute') or op.startswith('ds_swizzle'):
            s.kind = 'ds'; s.w = R(ops[:1]); s.r = R(ops[1:])
        elif op.startswith('buffer_load'):
            s.kind = 'vmem'
            if 'lds' in s.mods:
                s.r = R(ops) + [('s', 'm0')]; s.dma = True
            else:
                s.w = R(ops[:1]); s.r = R(ops[1:])
        elif op.startswith('buffer_store'):
            s.kind = 'vmem'; s.r = R(ops); s.store = R(ops[:1])
        elif op.startswith('s_load') or op.startswith('s_memtime') or op.startswith('s_memrealtime'):
            s.kind = 'smem'; s.w = R(ops[:1]); s.r = R(ops[1:])
        elif op == 's_waitcnt':
            s.kind = 'wait'
            m = re.search(r'vmcnt\((\d+)\)', t); s.vm = int(m.group(1)) if m else None
            m = re.search(r'lgkmcnt\((\d+)\)', t); s.lgkm = int(m.group(1)) if m else None
        elif op == 's_nop':
            s.kind = 'nop'; s.n = int(ops[0]) + 1
        elif op.startswith('s_cmp') or op.startswith('s_cbranch') or op in ('s_barrier', 's_branch', 's_endpgm', 's_setprio', 's_bitcmp1_b32'):
            s.kind = 'salu'; s.r = R(ops)
            if 'vcc' in op: s.r += [('s', 'vcc')]
        elif op.startswith('s_'):
            s.kind = 'salu'; s.w = R(ops[:1]); s.r = R(ops[1:])
            if 'saveexec' in op: s.w += [('s', 'exec')]
        s.trans = op.replace('_e32', '').replace('_e64', '') in TRANS
        s.states = s.n if s.kind == 'nop' else 1

def check(lines, name='', pending=None):
    ins = []
    for l in lines:
        t = l.split(';')[0].strip()
        if not t or t.endswith(':') or t.startswith('.'): continue
        ins.append(I(t))
    probs = []
    pos = []
    p = 0
    for x in ins:
        pos.append(p); p += x.states
    def dist(i, j): return pos[j] - pos[i] - ins[i].states
    W = 24
    lg = []; vm = []
    for j, y in enumerate(ins):
        touched = set(y.r) | set(y.w)
        if y.kind != 'wait':
            for q, nm in ((lg, 'lgkm'), (vm, 'vm')):
                for (i, regs) in q:
                    ov = touched & regs
                    if ov and not (ins[i].kind == y.kind and not (set(y.r) & regs) and False):
                        probs.append('%s: %s not waited: [%d] %s -> [%d] %s' % (name, nm, i, ins[i].text, j, y.text))
        if y.kind == 'wait':
            if y.vm is not None:
                while len(vm) > y.vm: vm.pop(0)
            if y.lgkm is not None:
                if any(ins[i].kind == 'smem' for i, _ in lg) and y.lgkm != 0:
                    probs.append('%s: counted lgkmcnt with smem outstanding at [%d]' % (name, j))
                while len(lg) > y.lgkm: lg.pop(0)
        elif y.kind in ('ds', 'smem'):
            lg.append((j, set(y.w)))
            if len(lg) > 15 and y.kind == 'ds': pass
        elif y.kind == 'vmem':
            vm.append((j, set(y.w)))
            if len(vm) > 63: probs.append('%s: vmcnt overflow at [%d]' % (name, j))
        for i in range(max(0, j-W), j):
            x = ins[i]
            d = dist(i, j)
            need = 0; why = ''
            xw = set(x.w)
            if x.kind == 'mfma':
                n_rw = {4: 8, 8: 12}[x.passes]
                if y.kind == 'mfma':
                    if xw & set(y.ab): need, why = n_rw, 'mfma D->AB'
                    elif xw & set(y.c) and set(y.c) != xw: need, why = {4: 6, 8: 10}[x.passes], 'mfma D->C partial'
                    elif xw & set(y.w) and set(y.c) != xw: need, why = n_rw, 'mfma D->D waw (no chain)'
                elif y.kind in ('valu', 'ds', 'vmem') and xw & (set(y.r) | set(y.w)): need, why = n_rw, 'mfma D->valu/mem'
                if y.kind == 'valu' and set(x.c) & set(y.w) and need < {4: 3, 8: 7}[x.passes]: need, why = {4: 3, 8: 7}[x.passes], 'mfma C war'
            elif x.kind == 'valu':
                vw = {r for r in xw if r[0] in 'va'}
                sw = {r for r in xw if r[0] == 's'}
                if y.kind == 'mfma' and vw & set(y.r): need, why = 2, 'valu->mfma'
                if y.kind == 'valu':
                    if x.trans and not y.trans and vw & set(y.r): need, why = 1, 'trans->valu'
                    if getattr(y, 'perm', False) and vw & set(y.r): need, why = 2, 'valu->permlane'
                    if getattr(y, 'dpp', False) and vw & set(y.r): need, why = 2, 'valu->dpp'
                    if getattr(y, 'lane', False) and vw & set(y.r): need, why = max(need, 1), 'valu->readlane'
                    if sw & set(y.r): need, why = max(need, 2), 'valu sgpr->valu'
                if y.kind == 'vmem' and sw & set(y.r): need, why = 5, 'valu sgpr->vmem'
                if y.kind == 'salu' and sw & set(y.r): need, why = 1, 'valu sgpr->salu (pad)'
            elif x.kind == 'salu':
                if ('s', 'm0') in xw and getattr(y, 'dma', False): need, why = 1, 'm0->dma'
            elif x.kind == 'vmem' and hasattr(x, 'store') and len(x.store) >= 3:
                if y.kind == 'valu' and set(x.store) & set(y.w): need, why = 2, 'store war'
                elif set(x.store) & set(y.w): need, why = 1, 'store war'
            if d < need:
                probs.append('%s: %s needs %d has %d: [%d] %s -> [%d] %s' % (name, why, need, d, i, x.text, j, y.text))
    return probs
```

```python
import sys, struct, math, argparse
from asmchk import check

def f32hex(x): return "0x%08x" % struct.unpack("<I", struct.pack("<f", x))[0]

HEADER = """; Kernarg layout for this problem (48 bytes, ptrs only, base s[0:1]):
; @launch grid=(256,1,1) block=(256,1,1) lds=%d
%s
.amdgcn_target "amdgcn-amd-amdhsa--gfx950"
.text
.globl standalone__gqa_softmax__prompt_kernel
.p2align 8
.type standalone__gqa_softmax__prompt_kernel,@function
standalone__gqa_softmax__prompt_kernel:
"""
FOOTER = """
.section .rodata,"a"
.p2align 6
.amdhsa_kernel standalone__gqa_softmax__prompt_kernel
  .amdhsa_next_free_vgpr %d
  .amdhsa_next_free_sgpr 96
  .amdhsa_accum_offset 256
  .amdhsa_group_segment_fixed_size 0
  .amdhsa_kernarg_size 48
  .amdhsa_user_sgpr_count 2
  .amdhsa_user_sgpr_kernarg_segment_ptr 1
  .amdhsa_system_sgpr_workgroup_id_x 1
.end_amdhsa_kernel
"""

V_LANE = 1
T = list(range(2, 12))
DA = [12, 13]; QA = 14; OA = 15
KA = [16+i for i in range(4)]
VA = [20+i for i in range(8)]
ONES = 28
def NEGM(qs): return 32 + 4*qs
def P(b, qs): return 48 + 16*b + 4*qs
def S(b, kb, qs): return 80 + 32*b + 16*kb + 4*qs
def Q(qs, ks): return 144 + 16*qs + 4*ks
TMP = 208
def O(db, qs): return (qs*8 + db)*4
def KF(n): return 128 + 4*n
def VF(db): return 160 + 4*db
def L(qs): return 192 + 4*qs
NAGPR = 208
def v4(r): return "v[%d:%d]" % (r, r+3)
def a4(r): return "a[%d:%d]" % (r, r+3)
def a2(r): return "a[%d:%d]" % (r, r+1)
SRD_Q = "s[8:11]"; SRD_K = "s[12:15]"; SRD_V = "s[16:19]"; SRD_O = "s[20:23]"
S_W = 28; S_WB = 29; S_OFF = 30; S_CNT = 31; S_PASS = 32; S_C = 34
S_Q = [36, 37, 38, 39]; S_THR = 40
LDS_V = 65536; LDS_FLAG = 131072; LDS_BYTES = 131072 + 1024
NSTEP = 64
MF = "v_mfma_f32_16x16x32_bf16"

class Gen:
    def __init__(g, opt):
        g.o = opt
        g.L = []
        g.dmaq = []
    def e(g, s):
        if isinstance(s, (list, tuple)):
            for x in s: g.e(x)
        else: g.L.append(s)

    def blk_off(g, b): return ((b >> 1) & 3)*16384 + (b & 1)*8192
    def k_reads(g, b):
        return ["ds_read_b128 %s, v%d offset:%d" % (a4(KF(ks*2+kb)), KA[ks], g.blk_off(b) + kb*4096)
                for ks in range(4) for kb in range(2)]
    def v_reads(g, b, base=None):
        base = VF(0) if base is None else base
        return ["ds_read_b64_tr_b16 %s, v%d offset:%d" % (a2(base + 4*db + 2*h), VA[db], g.blk_off(b) + h*4096)
                for db in range(8) for h in range(2)]
    def dma(g, which, tile):
        srd = SRD_K if which == 'K' else SRD_V
        g.dmaq.append((which, tile))
        return ["buffer_load_dwordx4 v%d, %s, s%d offen offset:%d lds" % (DA[p & 1], srd, S_OFF, p*1024) if p else
                "buffer_load_dwordx4 v%d, %s, s%d offen lds" % (DA[0], srd, S_OFF) for p in range(4)]
    def m0(g, which, tile):
        return "s_add_u32 m0, s%d, %d" % (S_WB, (0 if which == 'K' else LDS_V) + (tile & 3)*16384)
    def vm_allow(g, needed):
        idx = max([i for i, x in enumerate(g.dmaq) if x in needed], default=-1)
        n = 0
        for x in g.dmaq[idx+1:]: n += 1 if x[0] == 'Q' else 4
        return n
    def qk_mfmas(g, b):
        out = []
        for ks in range(4):
            for kb in range(2):
                for qs in (range(4) if kb == 0 else range(3, -1, -1)):
                    s = S(b & 1, kb, qs)
                    c = v4(NEGM(qs)) if ks == 0 else v4(s)
                    out.append("%s %s, %s, %s, %s" % (MF, v4(s), a4(KF(ks*2+kb)), v4(Q(qs, ks)), c))
        return out
    def pv_mfmas(g, b, vbase=None):
        vbase = VF(0) if vbase is None else vbase
        out = []
        first = (b == 0)
        for qs in range(4):
            dbs = list(range(8)) if qs % 2 == 0 else list(range(7, -1, -1))
            for i, db in enumerate(dbs):
                if i == 4:
                    out.append("%s %s, %s, %s, %s" % (MF, a4(L(qs)), v4(ONES), v4(P(b & 1, qs)), "0" if first else a4(L(qs))))
                out.append("%s %s, %s, %s, %s" % (MF, a4(O(db, qs)), a4(vbase + 4*db), v4(P(b & 1, qs)), "0" if first else a4(O(db, qs))))
        return out
    def exps(g, b, qs):
        return ["v_exp_f32 v%d, v%d" % (S(b & 1, kb, qs)+r, S(b & 1, kb, qs)+r) for kb in range(2) for r in range(4)]
    def cvts(g, b, qs):
        return ["v_cvt_pk_bf16_f32 v%d, v%d, v%d" % (P(b & 1, qs)+k, S(b & 1, k >> 1, qs) + 2*(k & 1), S(b & 1, k >> 1, qs) + 2*(k & 1) + 1) for k in range(4)]
    def weave(g, mf, gaps):
        for i, m in enumerate(mf):
            g.e(m)
            g.e(gaps.pop(i, []))
        assert not gaps, gaps

    def bar(g, T_):
        need = [('K', T_+1), ('V', T_+1)]
        if T_+1 > 31: return ["s_waitcnt lgkmcnt(0)"]
        return ["s_waitcnt vmcnt(%d) lgkmcnt(0)" % g.vm_allow(need), "s_barrier"]

    def step(g, j, last_gap):
        gaps = {}
        add = lambda k, x: gaps.setdefault(k, []).extend(x if isinstance(x, list) else [x])
        mf = g.pv_mfmas(j, KF(0) if j == NSTEP-1 else None)
        T_ = j >> 1
        if j+2 < NSTEP:
            kr = g.k_reads(j+2)
            for i in range(4): add(2*i, kr[2*i:2*i+2])
            which, tile = ('V', T_+3) if j % 2 == 0 else ('K', T_+4)
            if tile <= 31:
                d = g.dma(which, tile)
                for i in range(4): add(2*i+1, d[i])
        elif j+2 == NSTEP:
            vr = g.v_reads(j+1, KF(0))
            for i in range(8): add(i, vr[2*i:2*i+2])
        if j+1 < NSTEP:
            ex = g.exps(j+1, 0) + g.exps(j+1, 1); cv = g.cvts(j+1, 0) + g.cvts(j+1, 1)
            for k in range(8):
                add(8+3*k, ex[2*k]); add(9+3*k, ex[2*k+1])
                add(13+3*k if k < 7 else 33, cv[k])
        if j+2 < NSTEP:
            mf += g.qk_mfmas(j+2)
            add(35, "s_waitcnt lgkmcnt(0)")
            vr = g.v_reads(j+1)
            pos = 37
            while vr:
                n = 1 if (pos - 37) % 4 == 0 else 2
                add(pos, vr[:n]); vr = vr[n:]; pos += 2
            ex = g.exps(j+1, 2) + g.exps(j+1, 3); cv = g.cvts(j+1, 2) + g.cvts(j+1, 3)
            for k in range(16): add(32+2*k, ex[k])
            for k in range(8): add(37+4*k, cv[k])
            jn = j+1; Tn = jn >> 1
            which, tile = ('V', Tn+3) if jn % 2 == 0 else ('K', Tn+4)
            if tile <= 31 and jn+2 < NSTEP:
                if which == 'K': add(59, "s_add_u32 s%d, s%d, 16384" % (S_OFF, S_OFF))
                add(63, g.m0(which, tile))
            add(67, last_gap)
        elif j+2 == NSTEP:
            add(35, last_gap)
        else:
            ex = g.exps(j, 2) + g.exps(j, 3); cv = g.cvts(j, 2) + g.cvts(j, 3)
            for k in range(8):
                add(3*k, ex[2*k]); add(3*k+1, ex[2*k+1])
                add(3*k+5 if k != 3 and k != 7 else 3*k+2, cv[k])
        return mf, gaps

    def prologue(g):
        e = g.e
        e("s_cmp_ge_u32 s2, 256")
        e("s_cbranch_scc1 L_end")
        e("s_load_dwordx4 s[4:7], s[0:1], 0")
        e("s_load_dwordx4 s[24:27], s[0:1], 16")
        if g.o.stamp:
            e("s_load_dwordx2 s[60:61], s[0:1], 40")
            e("s_memtime s[62:63]"); e("s_memrealtime s[64:65]")
        e("v_lshrrev_b32 v%d, 6, v0" % T[0])
        e("v_and_b32 v%d, 63, v0" % V_LANE)
        e("v_readfirstlane_b32 s%d, v%d" % (S_W, T[0]))
        e("v_lshrrev_b32 v%d, 4, v%d" % (T[1], V_LANE))
        e("v_and_b32 v%d, 15, v%d" % (T[2], V_LANE))
        e("s_and_b32 s41, s2, 7")
        e("s_lshr_b32 s42, s2, 3")
        e("s_lshl_b32 s%d, s%d, 12" % (S_WB, S_W))
        e("v_lshlrev_b32 v%d, 1, v%d" % (T[3], T[1]))
        e("v_xor_b32 v%d, v%d, v%d" % (T[3], T[3], T[2]))
        e("v_lshlrev_b32 v%d, 8, v%d" % (T[4], T[1]))
        e("v_add_u32 v%d, s%d, v%d" % (T[4], S_WB, T[4]))
        e("v_lshl_add_u32 v%d, v%d, 4, v%d" % (DA[0], T[3], T[4]))
        e("v_xor_b32 v%d, 0x80, v%d" % (DA[1], DA[0]))
        e("v_lshlrev_b32 v%d, 8, v%d" % (T[5], T[2]))
        e("v_lshl_add_u32 v%d, v%d, 4, v%d" % (QA, T[1], T[5]))
        e("s_lshl_b32 s43, s41, 21")
        e("s_lshl_b32 s44, s42, 16")
        e("s_add_u32 s43, s43, s44")
        e("s_lshl_b32 s44, s%d, 14" % S_W)
        e("s_add_u32 s%d, s43, s44" % S_Q[0])
        for i in range(1, 4): e("s_add_u32 s%d, s%d, 4096" % (S_Q[i], S_Q[i-1]))
        e("s_lshl_b32 s41, s41, 19")
        e("s_mov_b32 s%d, 0" % S_PASS)
        e("s_waitcnt lgkmcnt(0)")
        e("s_mov_b32 s8, s4"); e("s_mov_b32 s9, s5"); e("s_mov_b32 s10, 0x1000000"); e("s_mov_b32 s11, 0x20000")
        e("s_add_u32 s12, s6, s41"); e("s_addc_u32 s13, s7, 0"); e("s_mov_b32 s14, 0x80000"); e("s_mov_b32 s15, 0x20000")
        e("s_add_u32 s16, s24, s41"); e("s_addc_u32 s17, s25, 0"); e("s_mov_b32 s18, 0x80000"); e("s_mov_b32 s19, 0x20000")
        e("s_mov_b32 s20, s26"); e("s_mov_b32 s21, s27"); e("s_mov_b32 s22, 0x1000000"); e("s_mov_b32 s23, 0x20000")
        for qs in range(4):
            for r in range(4): e("v_mov_b32 v%d, 0" % (NEGM(qs)+r))
        e("L_restart:")
        e("s_mov_b32 s%d, 0" % S_OFF)
        e(g.m0('K', 0)); e("s_nop 0"); e(g.dma('K', 0))
        e(g.m0('V', 0)); e("s_nop 0"); e(g.dma('V', 0))
        qorder = [(qs, ks) for ks in range(4) for qs in range(4)]
        for qs, ks in qorder:
            e("buffer_load_dwordx4 %s, v%d, %s, s%d offen offset:%d" % (v4(Q(qs, ks)), QA, SRD_Q, S_Q[qs], ks*64))
            g.dmaq.append(('Q', qs, ks))
        e("s_add_u32 s%d, s%d, 16384" % (S_OFF, S_OFF))
        e(g.m0('K', 1)); e("s_nop 0"); e(g.dma('K', 1))
        e(g.m0('V', 1)); e("s_nop 0"); e(g.dma('V', 1))
        e("s_add_u32 s%d, s%d, 16384" % (S_OFF, S_OFF))
        e(g.m0('K', 2)); e("s_nop 0"); e(g.dma('K', 2))
        e("v_lshrrev_b32 v%d, 4, v%d" % (T[1], V_LANE))
        e("v_and_b32 v%d, 15, v%d" % (T[2], V_LANE))
        e("v_and_b32 v%d, 7, v%d" % (T[3], V_LANE))
        e("v_lshlrev_b32 v%d, 1, v%d" % (T[3], T[3]))
        e("v_xor_b32 v%d, v%d, v%d" % (T[3], T[3], T[1]))
        e("v_lshlrev_b32 v%d, 8, v%d" % (T[5], T[2]))
        e("v_lshl_add_u32 v%d, v%d, 4, v%d" % (KA[0], T[3], T[5]))
        for ks in range(1, 4): e("v_xor_b32 v%d, %d, v%d" % (KA[ks], ks*64, KA[0]))
        e("v_lshrrev_b32 v%d, 2, v%d" % (T[6], V_LANE))
        e("v_and_b32 v%d, 7, v%d" % (T[7], T[6]))
        e("v_lshlrev_b32 v%d, 5, v%d" % (T[7], T[7]))
        e("v_and_b32 v%d, 3, v%d" % (T[8], V_LANE))
        e("v_lshl_add_u32 v%d, v%d, 3, v%d" % (T[7], T[8], T[7]))
        e("v_lshlrev_b32 v%d, 8, v%d" % (T[6], T[6]))
        e("v_add_u32 v%d, 0x%x, v%d" % (T[6], LDS_V, T[6]))
        e("v_add_u32 v%d, v%d, v%d" % (VA[0], T[6], T[7]))
        for db in range(1, 8): e("v_xor_b32 v%d, %d, v%d" % (VA[db], db*32, VA[0]))
        e("v_and_b32 v%d, 1, v%d" % (T[3], T[1]))
        e("v_lshl_add_u32 v%d, v%d, 5, v%d" % (T[3], T[3], T[5]))
        e("v_lshrrev_b32 v%d, 1, v%d" % (T[4], T[1]))
        e("v_lshl_add_u32 v%d, v%d, 4, v%d" % (OA, T[4], T[3]))
        e("v_cmp_eq_u32 vcc, 0, v%d" % T[8])
        e("v_mov_b32 v%d, 0x3f803f80" % T[9])
        c = f32hex(math.log2(math.e)/math.sqrt(128.0))
        e("s_mov_b32 s%d, %s" % (S_C, c)); e("s_mov_b32 s%d, %s" % (S_C+1, c))
        for r in range(4): e("v_cndmask_b32 v%d, 0, v%d, vcc" % (ONES+r, T[9]))
        e("s_mov_b32 s%d, %s" % (S_THR, f32hex(2.0**g.o.thr)))
        e("s_waitcnt vmcnt(%d)" % g.vm_allow([('K', 0), ('V', 0)]))
        e("s_barrier")
        e(g.k_reads(0))
        e(g.m0('V', 2)); e("s_nop 0"); e(g.dma('V', 2))
        e("s_add_u32 s%d, s%d, 16384" % (S_OFF, S_OFF))
        e(g.m0('K', 3)); e("s_nop 0"); e(g.dma('K', 3))
        for n, (qs, ks) in enumerate(qorder):
            e("s_waitcnt vmcnt(%d)" % g.vm_allow([('Q', qs, ks)]))
            x = Q(qs, ks); t = TMP + 8*(n & 1)
            for r in range(4):
                e("v_lshlrev_b32 v%d, 16, v%d" % (t+2*r, x+r))
                e("v_and_b32 v%d, 0xffff0000, v%d" % (t+2*r+1, x+r))
            for r in range(4): e("v_pk_mul_f32 v[%d:%d], v[%d:%d], s[%d:%d]" % (t+2*r, t+2*r+1, t+2*r, t+2*r+1, S_C, S_C+1))
            for r in range(4): e("v_cvt_pk_bf16_f32 v%d, v%d, v%d" % (x+r, t+2*r, t+2*r+1))
        if g.o.stamp: e("s_memtime s[66:67]"); e("s_memrealtime s[68:69]")
        e("s_waitcnt lgkmcnt(0)")
        e("s_nop 0")
        mf = g.qk_mfmas(0); kr = g.k_reads(1)
        gaps = {4*n+4: [kr[n]] for n in range(7)}
        g.weave(mf, gaps)
        e("s_nop 0"); e(kr[7])
        e("s_cmp_lg_u32 s%d, 0" % S_PASS)
        e("s_nop 5")
        e("s_cbranch_scc1 L_skipmax")
        M = [TMP+i for i in range(4)]; U = [TMP+4+i for i in range(4)]
        for qs in range(4): e("v_max3_f32 v%d, v%d, v%d, v%d" % (M[qs], S(0,0,qs), S(0,0,qs)+1, S(0,0,qs)+2))
        for qs in range(4): e("v_max3_f32 v%d, v%d, v%d, v%d" % (M[qs], M[qs], S(0,0,qs)+3, S(0,1,qs)))
        for qs in range(4): e("v_max3_f32 v%d, v%d, v%d, v%d" % (M[qs], M[qs], S(0,1,qs)+1, S(0,1,qs)+2))
        for qs in range(4): e("v_max_f32 v%d, v%d, v%d" % (M[qs], M[qs], S(0,1,qs)+3))
        g.xmax(M, U)
        for qs in range(4):
            for kb in range(2):
                for r in range(4): e("v_add_f32 v%d, v%d, v%d" % (S(0,kb,qs)+r, S(0,kb,qs)+r, NEGM(qs)))
        e("L_skipmax:")
        e("s_waitcnt lgkmcnt(0)")
        e("s_nop 0")
        mf = g.qk_mfmas(1); gaps = {}
        add = lambda k, x: gaps.setdefault(k, []).append(x)
        vr = g.v_reads(0)
        for i in range(16): add(i, vr[i])
        ex = sum((g.exps(0, qs) for qs in range(4)), []); cv = sum((g.cvts(0, qs) for qs in range(4)), [])
        for i in range(32):
            add(i, ex[i])
            if i >= 3 and i % 2 == 1: add(i, cv[(i-3)//2])
        add(31, "s_nop 0"); add(31, cv[15])
        add(29, g.m0('V', 3))
        for x in g.bar(0): add(31, x)
        g.weave(mf, gaps)

    def xmax(g, M, U):
        e = g.e
        for op in ("v_permlane32_swap_b32", "v_permlane16_swap_b32"):
            for qs in range(4): e("v_mov_b32 v%d, v%d" % (U[qs], M[qs]))
            e("s_nop 0")
            for qs in range(4): e("%s v%d, v%d" % (op, M[qs], U[qs]))
            for qs in range(4): e("v_max_f32 v%d, v%d, v%d" % (M[qs], M[qs], U[qs]))
        for qs in range(4):
            for r in range(4): e("v_mul_f32 v%d, -1.0, v%d" % (NEGM(qs)+r, M[qs]))

    def epilogue(g):
        e = g.e
        if g.o.stamp: e("s_memtime s[70:71]"); e("s_memrealtime s[72:73]")
        e("s_nop 7")
        LV = [T[0]+i for i in range(4)]; RV = [T[4]+i for i in range(4)]
        for qs in range(4): e("v_accvgpr_read_b32 v%d, a%d" % (LV[qs], L(qs)))
        for qs in range(4): e("v_rcp_f32 v%d, v%d" % (RV[qs], LV[qs]))
        e("v_max3_f32 v%d, v%d, v%d, v%d" % (T[8], LV[0], LV[1], LV[2]))
        e("v_cmp_nle_f32 s[42:43], v%d, s%d" % (LV[0], S_THR))
        e("v_cmp_nle_f32 s[44:45], v%d, s%d" % (LV[1], S_THR))
        e("v_cmp_nle_f32 s[46:47], v%d, s%d" % (LV[2], S_THR))
        e("v_cmp_nle_f32 s[48:49], v%d, s%d" % (LV[3], S_THR))
        e("v_lshlrev_b32 v%d, 2, v0" % T[8])
        e("s_or_b64 s[42:43], s[42:43], s[44:45]")
        e("s_or_b64 s[46:47], s[46:47], s[48:49]")
        e("s_or_b64 s[42:43], s[42:43], s[46:47]")
        e("s_cselect_b32 s44, 1, 0")
        e("v_mov_b32 v%d, s44" % T[9])
        e("v_add_u32 v%d, 0x%x, v%d" % (T[8], LDS_FLAG, T[8]))
        e("ds_write_b32 v%d, v%d" % (T[8], T[9]))
        for qs in range(4):
            F = 48 + 48*(qs & 1); Pk = F + 32
            for db in range(8):
                for r in range(4): e("v_accvgpr_read_b32 v%d, a%d" % (F+4*db+r, O(db, qs)+r))
            e("v_mov_b32 v%d, v%d" % (TMP, RV[qs])); e("v_mov_b32 v%d, v%d" % (TMP+1, RV[qs]))
            for i in range(16): e("v_pk_mul_f32 v[%d:%d], v[%d:%d], v[%d:%d]" % (F+2*i, F+2*i+1, F+2*i, F+2*i+1, TMP, TMP+1))
            for i in range(16): e("v_cvt_pk_bf16_f32 v%d, v%d, v%d" % (Pk+i, F+2*i, F+2*i+1))
            e("s_nop 0")
            for u in range(4):
                e("v_permlane16_swap_b32 v%d, v%d" % (Pk+4*u, Pk+4*u+2))
                e("v_permlane16_swap_b32 v%d, v%d" % (Pk+4*u+1, Pk+4*u+3))
            for u in range(4):
                e("buffer_store_dwordx4 %s, v%d, %s, s%d offen offset:%d%s" % (v4(Pk+4*u), OA, SRD_O, S_Q[qs], u*64, g.o.stmod))
        if g.o.stamp:
            e("s_waitcnt vmcnt(0)")
            e("s_memtime s[74:75]"); e("s_memrealtime s[76:77]")
            e("s_waitcnt lgkmcnt(0)")
            e("s_mov_b32 s80, s60"); e("s_mov_b32 s81, s61"); e("s_mov_b32 s82, 0x100000"); e("s_mov_b32 s83, 0x20000")
            for i, (a, b) in enumerate(((66, 62), (70, 66), (74, 70), (74, 62), (68, 64), (72, 68), (76, 72), (76, 64))):
                e("s_sub_u32 s84, s%d, s%d" % (a, b)); e("v_mov_b32 v%d, s84" % (TMP+i))
            e("s_lshl_b32 s84, s2, 7"); e("s_lshl_b32 s85, s%d, 5" % S_W); e("s_add_u32 s84, s84, s85")
            e("v_mov_b32 v%d, s84" % T[0])
            e("v_cmp_eq_u32 vcc, 0, v%d" % V_LANE); e("s_nop 1")
            e("s_and_saveexec_b64 s[86:87], vcc")
            e("buffer_store_dwordx4 %s, v%d, s[80:83], 0 offen" % (v4(TMP), T[0]))
            e("buffer_store_dwordx4 %s, v%d, s[80:83], 0 offen offset:16" % (v4(TMP+4), T[0]))
            e("s_mov_b64 exec, s[86:87]")
        e("s_cmp_lg_u32 s%d, 0" % S_PASS)
        e("s_cbranch_scc1 L_end")
        e("v_and_b32 v%d, 3, v%d" % (T[8], V_LANE))
        e("v_lshlrev_b32 v%d, 8, v%d" % (T[8], T[8]))
        e("v_add_u32 v%d, 0x%x, v%d" % (T[8], LDS_FLAG, T[8]))
        e("s_waitcnt lgkmcnt(0)")
        e("s_barrier")
        e("ds_read_b32 v%d, v%d" % (T[9], T[8]))
        e("s_waitcnt lgkmcnt(0)")
        e("v_cmp_ne_u32 vcc, 0, v%d" % T[9])
        e("s_nop 1")
        e("s_cbranch_vccz L_end")

    def fallback(g):
        e = g.e
        M = [TMP+i for i in range(4)]; U = [TMP+4+i for i in range(4)]
        KT = 48; ST = 80
        e("s_waitcnt vmcnt(0)")
        for qs in range(4): e("v_mov_b32 v%d, 0xff800000" % M[qs])
        e("s_mov_b32 s42, 0")
        e("L_maxloop:")
        for ks in range(4): e("buffer_load_dwordx4 %s, v%d, %s, s42 offen offset:%d" % (v4(KT+4*ks), QA, SRD_K, ks*64))
        e("s_waitcnt vmcnt(0)")
        for ks in range(4):
            for qs in range(4):
                e("%s %s, %s, %s, %s" % (MF, v4(ST+4*qs), v4(KT+4*ks), v4(Q(qs, ks)), "0" if ks == 0 else v4(ST+4*qs)))
        e("s_nop 7")
        for qs in range(4):
            e("v_max3_f32 v%d, v%d, v%d, v%d" % (M[qs], M[qs], ST+4*qs, ST+4*qs+1))
            e("v_max3_f32 v%d, v%d, v%d, v%d" % (M[qs], M[qs], ST+4*qs+2, ST+4*qs+3))
        e("s_add_u32 s42, s42, 4096")
        e("s_cmp_lt_u32 s42, 0x80000")
        e("s_cbranch_scc1 L_maxloop")
        g.xmax(M, U)
        e("s_mov_b32 s%d, 1" % S_PASS)
        e("s_barrier")
        e("s_branch L_restart")

    def build(g):
        g.prologue()
        n0 = len(g.L)
        def lastgap(j):
            jn = j+1
            if jn >= NSTEP: return []
            return g.bar(jn >> 1) if jn % 2 == 0 else ["s_waitcnt lgkmcnt(0)"]
        for j in range(0, 8):
            mf, gaps = g.step(j, None if j == 7 else None)
            k = max(gaps); gaps[k] = [x for x in gaps[k] if x is not None]
            if j < 7: gaps[k] += lastgap(j)
            else: gaps[64] = gaps.get(64, []) + ["s_mov_b32 s%d, 0" % S_CNT]
            g.weave(mf, gaps)
        i_loop = len(g.L)
        g.e(".p2align 3") if False else None
        g.e("L_loop:")
        g.e(lastgap(7))
        for j in range(8, 16):
            mf, gaps = g.step(j, None)
            k = max(gaps); gaps[k] = [x for x in gaps[k] if x is not None]
            if j < 15: gaps[k] += lastgap(j)
            else:
                gaps[64] = gaps.get(64, []) + ["s_add_u32 s%d, s%d, 1" % (S_CNT, S_CNT)]
                gaps[66] = gaps.get(66, []) + ["s_cmp_lt_u32 s%d, 6" % S_CNT]
                gaps[k] += ["s_cbranch_scc1 L_loop"]
            g.weave(mf, gaps)
        i_tail = len(g.L)
        g.dmaq = [(x[0], x[1]+20) for x in g.dmaq if x[0] != 'Q']
        g.e(lastgap(55))
        for j in range(56, 64):
            mf, gaps = g.step(j, None)
            k = max(gaps); gaps[k] = [x for x in gaps[k] if x is not None]
            if j < 63: gaps[k] += lastgap(j)
            g.weave(mf, gaps)
        g.epilogue()
        i_fb = len(g.L)
        g.fallback()
        g.e("L_end:")
        g.e("s_endpgm")
        Ls = g.L
        body = Ls[i_loop:i_tail]
        path = Ls[:i_loop] + body + body + Ls[i_tail:i_fb]
        pr = check(path, 'main')
        i_sk0 = next(i for i, x in enumerate(Ls) if x.startswith("s_cbranch_scc1 L_skipmax"))
        i_sk1 = Ls.index("L_skipmax:"); i_rs = Ls.index("L_restart:")
        i_ml = Ls.index("L_maxloop:"); i_mle = Ls.index("s_cbranch_scc1 L_maxloop")
        path2 = Ls[i_tail:i_mle+1] + Ls[i_ml:-2] + Ls[i_rs:i_sk0+1] + Ls[i_sk1:i_loop]
        pr += check(path2, 'fallback')
        for p in pr: print("CHECK:", p, file=sys.stderr)
        return len(pr)

if __name__ == "__main__":
    ap = argparse.ArgumentParser()
    ap.add_argument("out")
    ap.add_argument("--stamp", action="store_true")
    ap.add_argument("--thr", type=float, default=30)
    ap.add_argument("--stmod", default="")
    o = ap.parse_args()
    if o.stmod: o.stmod = " " + o.stmod
    g = Gen(o)
    n = g.build()
    txt = HEADER % (LDS_BYTES, "; " + " ".join(sys.argv[2:])) + "\n".join(("" if x.endswith(":") else "    ") + x for x in g.L) + FOOTER % (256 + NAGPR)
    open(o.out, "w").write(txt)
    print("wrote", o.out, "instrs", len(g.L), "problems", n)
```
